```python
import torch

def _softmax(x, axis=-1):
    return torch.softmax(x, dim=axis)
def _gelu(x):
    return torch.nn.functional.gelu(x, approximate="tanh")
def _silu(x):
    return torch.nn.functional.silu(x)
def _sigmoid(x):
    return torch.sigmoid(x)
def _layernorm(x, axis=-1, eps=1e-5):
    m = x.mean(dim=axis, keepdim=True)
    v = x.var(dim=axis, keepdim=True, unbiased=False)
    return (x - m) / torch.sqrt(v + eps)
def _scatter_add(tgt, idx, src, axis=0):
    return tgt.clone().index_add_(axis, idx, src)
def _segment_sum(src, seg, n):
    out = torch.zeros((n,) + src.shape[1:], dtype=src.dtype)
    return out.index_add_(0, seg, src)
def _pad(x, pw):
    flat = tuple(v for pair in reversed(pw) for v in pair)
    return torch.nn.functional.pad(x, flat)

kernel_name = 'recurrent_scan__gqa_block_cached__mixer_channel_mlp__prompt'

def setup_inputs():

    _w = (lambda a: (lambda t: t.to(torch.bfloat16) if t.is_floating_point() else t)(torch.as_tensor(a)))
    def _A_setup():
        B, Sq, D = 1, 2048, 640
        Hq, Hkv, Sk, Dh = 32, 32, 2048, 192
        assert Hq % Hkv == 0, (Hq, Hkv)
        return {
            "x": _w((lambda *s: torch.randn(*s, dtype=torch.bfloat16) * 0.05)(B, Sq, D)),
            "k_cache": _w((lambda *s: torch.randn(*s, dtype=torch.bfloat16) * 1.6)(B, Hkv, Sk, Dh)),
            "v_cache": _w((lambda *s: torch.randn(*s, dtype=torch.bfloat16) * 0.8)(B, Hkv, Sk, Dh)),
            "wq": _w((lambda *s: torch.randn(*s, dtype=torch.bfloat16) * 1.6)(D, Hq * Dh) * (D ** -0.5)),
            "wo": _w((lambda *s: torch.randn(*s, dtype=torch.bfloat16) * 0.8)(Hq * Dh, D) * ((Hq * Dh) ** -0.5)),
        }
    _A_in = _A_setup()

    def _B_setup():
        B, S, D, F = 1, 2048, 640, 1536
        return {
            "x": _w((lambda *s: torch.randn(*s, dtype=torch.bfloat16) * 0.05)(B, S, D)),
            "w1": _w((lambda *s: torch.randn(*s, dtype=torch.bfloat16) * 3.2)(D, F) * (D ** -0.5)),
            "b1": _w((lambda *s: torch.randn(*s, dtype=torch.bfloat16) * 1.6)(F)),
            "w2": _w((lambda *s: torch.randn(*s, dtype=torch.bfloat16) * 0.2)(F, D) * (F ** -0.5)),
            "b2": _w((lambda *s: torch.randn(*s, dtype=torch.bfloat16) * 0.2)(D)),
        }
    _B_in = _B_setup()

    return {
        "A_x": _A_in["x"],
        "A_k_cache": _A_in["k_cache"],
        "A_v_cache": _A_in["v_cache"],
        "A_wq": _A_in["wq"],
        "A_wo": _A_in["wo"],
        "B_x": _B_in["x"],
        "B_w1": _B_in["w1"],
        "B_b1": _B_in["b1"],
        "B_w2": _B_in["w2"],
        "B_b2": _B_in["b2"],
    }

def reference(A_x, A_k_cache, A_v_cache, A_wq, A_wo, B_x, B_w1, B_b1, B_w2, B_b2):
    def _A_ref(x, k_cache, v_cache, wq, wo):
        B, Sq, D = x.shape
        Hq, Dh = 32, 192
        Hkv = k_cache.shape[1]
        rep = Hq // Hkv
        q = (lambda x, *d: x.permute(*d))((x @ wq).reshape(B, Sq, Hq, Dh), 0, 2, 1, 3)
        k = (lambda x, n, axis: torch.repeat_interleave(x, n, dim=axis))(k_cache, rep, axis=1)
        v = (lambda x, n, axis: torch.repeat_interleave(x, n, dim=axis))(v_cache, rep, axis=1)
        scores = torch.einsum("bhqd,bhkd->bhqk", q, k) * (Dh ** -0.5)
        p = _softmax(scores, axis=-1)
        o = torch.einsum("bhqk,bhkd->bhqd", p, v)
        return (lambda x, *d: x.permute(*d))(o, 0, 2, 1, 3).reshape(B, Sq, Hq * Dh) @ wo

    def _B_ref(x, w1, b1, w2, b2):
        y = _layernorm(x, axis=-1)
        h = _gelu(torch.einsum("bsd,df->bsf", y, w1) + b1)
        return torch.einsum("bsf,fd->bsd", h, w2) + b2

    x = A_x
    xn = _layernorm(x, axis=-1)
    s = _A_ref(xn, A_k_cache, A_v_cache, A_wq, A_wo)
    g = _silu(_B_ref(xn, B_w1, B_b1, B_w2, B_b2))
    return x + s * g
```

```python
class E:
    def __init__(self):
        self.lines = []
    def __call__(self, s):
        self.lines.append("    " + s)
    def label(self, s):
        self.lines.append(s + ":")
    def raw(self, s):
        self.lines.append(s)
    def comment(self, s):
        self.lines.append("    ; " + s)
    def text(self):
        return "\n".join(self.lines) + "\n"

def vr(b, n=1):
    return f"v{b}" if n == 1 else f"v[{b}:{b+n-1}]"
def sr(b, n=1):
    return f"s{b}" if n == 1 else f"s[{b}:{b+n-1}]"

WS_XN = 0
WS_Y  = 2621440
WS_Q  = 5242880
WS_H  = WS_Q + 25165824
WS_O  = WS_H + 6291456
WS_END = WS_O + 25165824

KA_X, KA_K, KA_V, KA_WQ, KA_WO, KA_BX, KA_W1, KA_B1, KA_W2, KA_B2, KA_OUT, KA_DBG, KA_WS = [8*i for i in range(13)]

def kernel_header(e, name):
    e.raw(f".globl {name}")
    e.raw(".p2align 8")
    e.raw(f".type {name},@function")
    e.label(name)

def kernel_desc(name, vgpr, sgpr=102, accum=None):
    if accum is None:
        accum = (vgpr + 3)//4*4
    return f""".amdhsa_kernel {name}
  .amdhsa_next_free_vgpr {vgpr}
  .amdhsa_next_free_sgpr {sgpr}
  .amdhsa_accum_offset {accum}
  .amdhsa_group_segment_fixed_size 0
  .amdhsa_kernarg_size 104
  .amdhsa_user_sgpr_count 2
  .amdhsa_user_sgpr_kernarg_segment_ptr 1
  .amdhsa_system_sgpr_workgroup_id_x 1
.end_amdhsa_kernel
"""

def srd(e, d, base_lo, base_hi, nbytes):
    e(f"s_mov_b32 s{d}, s{base_lo}")
    e(f"s_and_b32 s{d+1}, s{base_hi}, 0xffff")
    e(f"s_mov_b32 s{d+2}, {nbytes}")
    e(f"s_mov_b32 s{d+3}, 0x00020000")

def add64(e, d, a, imm):
    e(f"s_add_u32 s{d}, s{a}, {imm}")
    e(f"s_addc_u32 s{d+1}, s{a+1}, 0")
```

```python
from common import *
import math, struct

KB = 24576
LDS_K0, LDS_K1, LDS_V0, LDS_V1 = 0, 24576, 49152, 73728
ATTN_LDS = 98304

def gen_attn(e):
    name = "attn_kernel"
    kernel_header(e, name)
    e("s_cmp_ge_u32 s2, 256")
    e("s_cbranch_scc1 L_attn_done")
    e(f"s_load_dwordx2 s[4:5], s[0:1], {KA_WS}")
    e(f"s_load_dwordx2 s[6:7], s[0:1], {KA_K}")
    e(f"s_load_dwordx2 s[8:9], s[0:1], {KA_V}")
    e("v_lshrrev_b32 v1, 6, v0")
    e("s_nop 0")
    e("v_readfirstlane_b32 s3, v1")
    e("s_and_b32 s24, s2, 7")
    e("s_lshl_b32 s24, s24, 2")
    e("s_bfe_u32 s25, s2, 0x20003")
    e("s_add_u32 s24, s24, s25")
    e("s_lshr_b32 s25, s2, 5")
    e("s_waitcnt lgkmcnt(0)")
    Q = 8
    O = Q + 48
    S = O + 96
    P = S + 32
    KF = P + 16
    VF = KF + 16
    KA = VF + 16
    VA = KA + 4
    DK = VA + 2
    DV = DK + 3
    M_ = DV + 3
    L_ = M_ + 1
    T0 = L_ + 1
    add64(e, 12, 4, WS_Q); srd(e, 28, 12, 13, 25165824)
    e("s_mul_i32 s14, s24, 786432")
    e("s_add_u32 s12, s6, s14"); e("s_addc_u32 s13, s7, 0"); srd(e, 32, 12, 13, 786432)
    e("s_add_u32 s12, s8, s14"); e("s_addc_u32 s13, s9, 0"); srd(e, 36, 12, 13, 786432)
    e(f"v_and_b32 v{T0}, 31, v0")
    e(f"v_bfe_u32 v{T0+1}, v0, 5, 1")
    e("s_lshl_b32 s14, s25, 8")
    e("s_lshl_b32 s15, s3, 5")
    e("s_add_u32 s14, s14, s15")
    e(f"v_add_u32 v2, s14, v{T0}")
    e("v_mul_u32_u24 v2, 12288, v2")
    e("s_mul_i32 s14, s24, 384")
    e(f"v_add_u32 v2, s14, v2")
    e(f"v_lshl_add_u32 v3, v{T0+1}, 4, v2")
    for s in range(12):
        e(f"buffer_load_dwordx4 {vr(Q+4*s,4)}, v3, s[28:31], 0 offen offset:{32*s}")
    e(f"v_mul_u32_u24 v{T0+2}, 384, v{T0}")
    e(f"v_bfe_u32 v{T0+3}, v0, 1, 3")
    for q4 in range(4):
        e(f"v_add_u32 v{T0+4}, {2*q4}, v{T0+1}")
        e(f"v_xor_b32 v{T0+4}, v{T0+4}, v{T0+3}")
        e(f"v_lshl_add_u32 v{KA+q4}, v{T0+4}, 4, v{T0+2}")
    e(f"v_bfe_u32 v{T0+2}, v0, 2, 2")
    e(f"v_lshl_add_u32 v{T0+3}, v{T0+1}, 2, v{T0+2}")
    e(f"v_mul_u32_u24 v{T0+3}, 384, v{T0+3}")
    e(f"v_bfe_u32 v{T0+4}, v0, 4, 1")
    e(f"v_lshl_add_u32 v{T0+3}, v{T0+4}, 5, v{T0+3}")
    e(f"v_and_b32 v{T0+4}, 3, v0")
    e(f"v_lshl_add_u32 v{T0+3}, v{T0+4}, 3, v{T0+3}")
    e(f"v_add_u32 v{T0+3}, {LDS_V0}, v{T0+3}")
    e(f"v_bfe_u32 v{T0+4}, v0, 3, 1")
    e(f"v_lshlrev_b32 v{T0+4}, 6, v{T0+4}")
    e(f"v_add_u32 v{VA}, v{T0+3}, v{T0+4}")
    e(f"v_sub_u32 v{VA+1}, v{T0+3}, v{T0+4}")
    e(f"v_and_b32 v{T0}, 63, v0")
    e("s_mov_b32 s15, 2731")
    for i in range(3):
        e("s_mul_i32 s14, s3, 192")
        e(f"s_add_u32 s14, s14, {64*i}")
        e(f"v_add_u32 v{T0+1}, s14, v{T0}")
        e(f"v_mul_lo_u32 v{T0+2}, v{T0+1}, s15")
        e(f"v_lshrrev_b32 v{T0+2}, 16, v{T0+2}")
        e(f"v_mul_u32_u24 v{T0+3}, 24, v{T0+2}")
        e(f"v_sub_u32 v{T0+3}, v{T0+1}, v{T0+3}")
        e(f"v_mul_u32_u24 v{T0+5}, 384, v{T0+2}")
        e(f"v_bfe_u32 v{T0+4}, v{T0+2}, 1, 3")
        e(f"v_xor_b32 v{T0+4}, v{T0+3}, v{T0+4}")
        e(f"v_lshl_add_u32 v{DK+i}, v{T0+4}, 4, v{T0+5}")
        e(f"v_bfe_u32 v{T0+4}, v{T0+2}, 1, 1")
        e(f"v_lshlrev_b32 v{T0+4}, 2, v{T0+4}")
        e(f"v_xor_b32 v{T0+4}, v{T0+3}, v{T0+4}")
        e(f"v_lshl_add_u32 v{DV+i}, v{T0+4}, 4, v{T0+5}")
    for i in range(96):
        e(f"v_mov_b32 v{O+i}, 0")
    e(f"v_mov_b32 v{M_}, 0xff800000")
    e(f"v_mov_b32 v{L_}, 0")
    c = math.log2(math.e)/math.sqrt(192.0)
    e(f"s_mov_b32 s40, {struct.unpack('<I', struct.pack('<f', c))[0]:#x}")
    e("s_mul_i32 s41, s3, 3072")
    e("s_mov_b32 s42, 0")
    def dma(buf):
        for i in range(3):
            e(f"s_add_u32 s14, s41, {(LDS_K0, LDS_K1)[buf] + 1024*i}")
            e("s_mov_b32 m0, s14")
            e(f"s_add_u32 s14, s41, {(LDS_V0, LDS_V1)[buf] + 1024*i}")
            e(f"buffer_load_dwordx4 v{DK+i}, s[32:35], s42 offen lds")
            e("s_mov_b32 m0, s14")
            e("s_nop 0")
            e(f"buffer_load_dwordx4 v{DV+i}, s[36:39], s42 offen lds")
    dma(0)
    e("s_mov_b32 s43, 0")
    e.label("L_attn_loop")
    for buf in range(2):
        e("s_waitcnt vmcnt(0)")
        e("s_barrier")
        e(f"s_add_u32 s42, s42, {KB}")
        if buf == 1:
            e("s_cmp_eq_u32 s43, 30")
            e("s_cbranch_scc1 L_attn_nopf")
        dma(1-buf)
        if buf == 1:
            e.label("L_attn_nopf")
        for sub in range(2):
            Sx = S + 16*sub
            kof = buf*KB + sub*12288
            for s in range(4):
                e(f"ds_read_b128 {vr(KF+4*s,4)}, v{KA+s} offset:{kof}")
            for s in range(12):
                e(f"s_waitcnt lgkmcnt({min(3, 11-s)})")
                cc = "0" if s == 0 else vr(Sx,16)
                e(f"v_mfma_f32_32x32x16_bf16 {vr(Sx,16)}, {vr(KF+4*(s%4),4)}, {vr(Q+4*s,4)}, {cc}")
                if s + 4 < 12:
                    e(f"ds_read_b128 {vr(KF+4*(s%4),4)}, v{KA+(s%4)} offset:{kof + ((s+4)//4)*128}")
            e("s_nop 7"); e("s_nop 7")
            e(f"v_max3_f32 v{T0}, v{Sx}, v{Sx+1}, v{Sx+2}")
            for i in range(3, 15, 2):
                e(f"v_max3_f32 v{T0}, v{T0}, v{Sx+i}, v{Sx+i+1}")
            e(f"v_max_f32 v{T0}, v{T0}, v{Sx+15}")
            e(f"v_mov_b32 v{T0+1}, v{T0}")
            e(f"v_mov_b32 v{T0+2}, v{T0}")
            e("s_nop 1")
            e(f"v_permlane32_swap_b32 v{T0+1}, v{T0+2}")
            e("s_nop 1")
            e(f"v_max3_f32 v{T0}, v{T0+1}, v{T0+2}, v{M_}")
            e(f"v_sub_f32 v{T0+1}, v{M_}, v{T0}")
            e(f"v_mul_f32 v{T0+1}, s40, v{T0+1}")
            e(f"v_exp_f32 v{T0+1}, v{T0+1}")
            e(f"v_mov_b32 v{M_}, v{T0}")
            e(f"v_mul_f32 v{T0+2}, s40, v{T0}")
            for i in range(16):
                e(f"v_fma_f32 v{Sx+i}, v{Sx+i}, s40, -v{T0+2}")
                e(f"v_exp_f32 v{Sx+i}, v{Sx+i}")
            e(f"v_mul_f32 v{L_}, v{L_}, v{T0+1}")
            for i in range(16):
                e(f"v_add_f32 v{L_}, v{L_}, v{Sx+i}")
            for i in range(8):
                e(f"v_cvt_pk_bf16_f32 v{P+i}, v{Sx+2*i}, v{Sx+2*i+1}")
            for i in range(96):
                e(f"v_mul_f32 v{O+i}, v{O+i}, v{T0+1}")
            e("s_nop 1")
            vof = buf*KB + sub*32*384
            seq = [(dt, j) for j in range(2) for dt in range(6)]
            def vread(k):
                dt, j = seq[k]
                for t in range(2):
                    e(f"ds_read_b64_tr_b16 {vr(VF+4*(k%4)+2*t,2)}, v{VA+(dt%2)} offset:{vof + (16*j+8*t)*384 + 64*dt}")
            for k in range(4):
                vread(k)
            for k in range(12):
                dt, j = seq[k]
                e(f"s_waitcnt lgkmcnt({2*min(3, 11-k)})")
                e(f"v_mfma_f32_32x32x16_bf16 {vr(O+16*dt,16)}, {vr(VF+4*(k%4),4)}, {vr(P+4*j,4)}, {vr(O+16*dt,16)}")
                if k + 4 < 12:
                    vread(k+4)
    e("s_add_u32 s43, s43, 2")
    e("s_cmp_lt_u32 s43, 32")
    e("s_cbranch_scc1 L_attn_loop")
    e("s_nop 7"); e("s_nop 7")
    add64(e, 12, 4, WS_O); srd(e, 28, 12, 13, 25165824)
    e(f"v_mov_b32 v{T0+1}, v{L_}")
    e(f"v_mov_b32 v{T0+2}, v{L_}")
    e("s_nop 1")
    e(f"v_permlane32_swap_b32 v{T0+1}, v{T0+2}")
    e("s_nop 1")
    e(f"v_add_f32 v{T0}, v{T0+1}, v{T0+2}")
    e(f"v_rcp_f32 v{T0}, v{T0}")
    e(f"v_bfe_u32 v{T0+1}, v0, 5, 1")
    e(f"v_lshl_add_u32 v2, v{T0+1}, 3, v2")
    for dt in range(6):
        for gq in range(4):
            a = O+16*dt+4*gq
            for i in range(4):
                e(f"v_mul_f32 v{a+i}, v{a+i}, v{T0}")
            e(f"v_cvt_pk_bf16_f32 v{T0+4}, v{a}, v{a+1}")
            e(f"v_cvt_pk_bf16_f32 v{T0+5}, v{a+2}, v{a+3}")
            e(f"buffer_store_dwordx2 {vr(T0+4,2)}, v2, s[28:31], 0 offen offset:{64*dt+16*gq}")
            e("s_nop 1")
    e.label("L_attn_done")
    e("s_endpgm")
    return kernel_desc(name, 256)
```

```python
from common import *

class Gemm:
    def __init__(self, e, TM, TN, vbase):
        self.e = e; self.TM = TM; self.TN = TN
        self.mt = TM//64; self.nt = TN//64
        self.ABYTES = TM*128; self.BBYTES = 64*TN*2
        self.BUF = self.ABYTES + self.BBYTES
        v = vbase
        self.v_aaddr = v; v += 4
        self.v_baddr = v; v += self.nt
        self.v_adma = v; v += TM//32
        self.v_bdma = v; v += TN//32
        v = (v+3)//4*4
        self.v_af = v; v += 4*self.mt*2
        self.v_bf = v; v += 4*self.nt*2
        self.v_end = v

    def swb(self, row):
        return ((row & 3) << 2) if self.TN == 128 else (((row >> 1) & 1) << 2)

    def setup_read_addrs(self, s_wave, vt):
        e = self.e; TM, TN = self.TM, self.TN
        e(f"v_and_b32 v{vt}, 31, v0")
        e(f"v_bfe_u32 v{vt+1}, v0, 5, 1")
        e(f"s_lshr_b32 s20, s{s_wave}, 1")
        e(f"s_and_b32 s21, s{s_wave}, 1")
        e(f"s_mul_i32 s22, s20, {TM//2*128}")
        e(f"v_lshlrev_b32 v{vt+2}, 7, v{vt}")
        e(f"v_add_u32 v{vt+2}, s22, v{vt+2}")
        e(f"v_bfe_u32 v{vt+3}, v0, 1, 3")
        for ks in range(4):
            e(f"v_add_u32 v{vt+4}, {2*ks}, v{vt+1}")
            e(f"v_xor_b32 v{vt+4}, v{vt+4}, v{vt+3}")
            e(f"v_lshl_add_u32 v{self.v_aaddr+ks}, v{vt+4}, 4, v{vt+2}")
        e(f"v_bfe_u32 v{vt}, v0, 2, 2")
        e(f"v_lshl_add_u32 v{vt+2}, v{vt+1}, 3, v{vt}")
        e(f"v_mul_u32_u24 v{vt+2}, {TN*2}, v{vt+2}")
        e(f"v_and_b32 v{vt+3}, 1, v0")
        e(f"v_lshl_add_u32 v{vt+2}, v{vt+3}, 3, v{vt+2}")
        e(f"v_add_u32 v{vt+2}, {self.ABYTES}, v{vt+2}")
        if TN == 128:
            e(f"v_lshlrev_b32 v{vt+3}, 2, v{vt}")
        else:
            e(f"v_lshrrev_b32 v{vt+3}, 1, v{vt}")
            e(f"v_lshlrev_b32 v{vt+3}, 2, v{vt+3}")
        e(f"v_bfe_u32 v{vt+4}, v0, 4, 1")
        e(f"v_bfe_u32 v{vt+5}, v0, 1, 1")
        e(f"v_lshl_add_u32 v{vt+4}, v{vt+4}, 1, v{vt+5}")
        e(f"s_mul_i32 s22, s21, {TN//16}")
        e(f"v_add_u32 v{vt+4}, s22, v{vt+4}")
        for ni in range(self.nt):
            e(f"v_add_u32 v{vt+5}, {4*ni}, v{vt+4}")
            e(f"v_xor_b32 v{vt+5}, v{vt+5}, v{vt+3}")
            e(f"v_lshl_add_u32 v{self.v_baddr+ni}, v{vt+5}, 4, v{vt+2}")

    def setup_dma(self, s_wave, vt, lda, ldb):
        e = self.e; TM, TN = self.TM, self.TN
        e(f"v_and_b32 v{vt}, 63, v0")
        na = TM//32; nb = TN//32
        for i in range(na):
            e(f"s_mul_i32 s22, s{s_wave}, {na*64}")
            e(f"s_add_u32 s22, s22, {i*64}")
            e(f"v_add_u32 v{vt+1}, s22, v{vt}")
            e(f"v_lshrrev_b32 v{vt+2}, 3, v{vt+1}")
            e(f"v_and_b32 v{vt+3}, 7, v{vt+1}")
            e(f"v_bfe_u32 v{vt+4}, v{vt+2}, 1, 3")
            e(f"v_xor_b32 v{vt+3}, v{vt+3}, v{vt+4}")
            e(f"v_mul_u32_u24 v{vt+2}, {lda}, v{vt+2}")
            e(f"v_lshl_add_u32 v{self.v_adma+i}, v{vt+3}, 4, v{vt+2}")
        cpr = TN//8
        sh = {8: 3, 16: 4}[cpr]
        for i in range(nb):
            e(f"s_mul_i32 s22, s{s_wave}, {nb*64}")
            e(f"s_add_u32 s22, s22, {i*64}")
            e(f"v_add_u32 v{vt+1}, s22, v{vt}")
            e(f"v_lshrrev_b32 v{vt+2}, {sh}, v{vt+1}")
            e(f"v_and_b32 v{vt+3}, {cpr-1}, v{vt+1}")
            if TN == 128:
                e(f"v_and_b32 v{vt+4}, 3, v{vt+2}")
            else:
                e(f"v_bfe_u32 v{vt+4}, v{vt+2}, 1, 1")
            e(f"v_lshlrev_b32 v{vt+4}, 2, v{vt+4}")
            e(f"v_xor_b32 v{vt+3}, v{vt+3}, v{vt+4}")
            e(f"v_mul_u32_u24 v{vt+2}, {ldb}, v{vt+2}")
            e(f"v_lshl_add_u32 v{self.v_bdma+i}, v{vt+3}, 4, v{vt+2}")

    def dma(self, buf, s_wave, srdA, srdB, s_aoff, s_boff):
        e = self.e
        na = self.TM//32; nb = self.TN//32
        e(f"s_mul_i32 s22, s{s_wave}, {na*1024}")
        e(f"s_add_u32 s22, s22, {buf*self.BUF}")
        for i in range(na):
            e(f"s_mov_b32 m0, s22")
            e(f"s_add_u32 s22, s22, 1024")
            e(f"buffer_load_dwordx4 v{self.v_adma+i}, s[{srdA}:{srdA+3}], s{s_aoff} offen lds")
        e(f"s_mul_i32 s22, s{s_wave}, {nb*1024}")
        e(f"s_add_u32 s22, s22, {buf*self.BUF + self.ABYTES}")
        for i in range(nb):
            e(f"s_mov_b32 m0, s22")
            e(f"s_add_u32 s22, s22, 1024")
            e(f"buffer_load_dwordx4 v{self.v_bdma+i}, s[{srdB}:{srdB+3}], s{s_boff} offen lds")

    def compute(self, buf, acc, first):
        e = self.e; mt, nt = self.mt, self.nt
        def reads(ks, par):
            for mi in range(mt):
                e(f"ds_read_b128 {vr(self.v_af + par*4*mt + 4*mi, 4)}, v{self.v_aaddr+ks} offset:{buf*self.BUF + mi*4096}")
            for ni in range(nt):
                for t in range(2):
                    e(f"ds_read_b64_tr_b16 {vr(self.v_bf + par*4*nt + 4*ni + 2*t, 2)}, v{self.v_baddr+ni} offset:{buf*self.BUF + (16*ks+4*t)*self.TN*2}")
        nrd = mt + 2*nt
        reads(0, 0)
        for ks in range(4):
            if ks < 3:
                reads(ks+1, (ks+1) % 2)
                e(f"s_waitcnt lgkmcnt({nrd})")
            else:
                e("s_waitcnt lgkmcnt(0)")
            par = ks % 2
            for mi in range(mt):
                for ni in range(nt):
                    a = acc + (mi*nt+ni)*16
                    c = "0" if (first and ks == 0) else vr(a, 16)
                    e(f"v_mfma_f32_32x32x16_bf16 {vr(a,16)}, {vr(self.v_bf + par*4*nt + 4*ni, 4)}, {vr(self.v_af + par*4*mt + 4*mi, 4)}, {c}")

    def loop(self, tag, nkt, acc, s_wave, srdA, srdB, s_aoff, s_boff, ldb):
        e = self.e
        self.dma(0, s_wave, srdA, srdB, s_aoff, s_boff)
        e(f"s_mov_b32 s23, 0")
        e.label(f"L_{tag}_loop")
        for half in range(2):
            e("s_waitcnt vmcnt(0)")
            e("s_barrier")
            e(f"s_add_u32 s{s_aoff}, s{s_aoff}, 128")
            e(f"s_add_u32 s{s_boff}, s{s_boff}, {64*ldb}")
            if half == 1:
                e(f"s_cmp_eq_u32 s23, {nkt-2}")
                e(f"s_cbranch_scc1 L_{tag}_nopf")
            self.dma(1-half, s_wave, srdA, srdB, s_aoff, s_boff)
            if half == 1:
                e.label(f"L_{tag}_nopf")
            if half == 0:
                pass
            self.compute(half, acc, False)
        e("s_add_u32 s23, s23, 2")
        e(f"s_cmp_lt_u32 s23, {nkt}")
        e(f"s_cbranch_scc1 L_{tag}_loop")
        e("s_barrier")

def zero_regs(e, base, n):
    for i in range(n):
        e(f"v_mov_b32 v{base+i}, 0")

def rne_pair(e, d, a, b):
    e(f"v_cvt_pk_bf16_f32 v{d}, v{a}, v{b}")
    e(f"v_lshlrev_b32 v{a}, 16, v{d}")
    e(f"v_and_b32 v{b}, 0xffff0000, v{d}")

def sigmoid_mul(e, x, z, t):
    e(f"v_exp_f32 v{t}, -v{z}")
    e("s_nop 0")
    e(f"v_add_f32 v{t}, 1.0, v{t}")
    e(f"v_rcp_f32 v{t}, v{t}")
    e("s_nop 0")
    e(f"v_mul_f32 v{x}, v{x}, v{t}")

def gen_proj(e):
    name = "proj_kernel"
    kernel_header(e, name)
    ACC = 0
    e("s_cmp_ge_u32 s2, 960")
    e("s_cbranch_scc1 L_proj_done")
    e(f"s_load_dwordx2 s[4:5], s[0:1], {KA_WS}")
    e(f"s_load_dwordx2 s[6:7], s[0:1], {KA_WQ}")
    e(f"s_load_dwordx2 s[8:9], s[0:1], {KA_W1}")
    e(f"s_load_dwordx2 s[10:11], s[0:1], {KA_B1}")
    e("v_lshrrev_b32 v1, 6, v0")
    e("s_nop 0")
    e("v_readfirstlane_b32 s3, v1")
    e("s_and_b32 s24, s2, 15")
    e("s_lshr_b32 s25, s2, 4")
    e("s_waitcnt lgkmcnt(0)")
    g = Gemm(e, 128, 128, 2)
    ACC = g.v_end
    VT = ACC + 64
    e("s_cmp_lt_u32 s25, 48")
    e("s_cbranch_scc0 L_proj_mlp")
    add64(e, 12, 4, WS_XN); srd(e, 28, 12, 13, 2621440)
    srd(e, 32, 6, 7, 640*12288)
    add64(e, 12, 4, WS_Q); srd(e, 36, 12, 13, 25165824)
    e("s_mov_b32 s26, 12288")
    e("s_branch L_proj_go")
    e.label("L_proj_mlp")
    e("s_sub_u32 s25, s25, 48")
    add64(e, 12, 4, WS_Y); srd(e, 28, 12, 13, 2621440)
    srd(e, 32, 8, 9, 640*3072)
    add64(e, 12, 4, WS_H); srd(e, 36, 12, 13, 6291456)
    e("s_mov_b32 s26, 3072")
    e.label("L_proj_go")
    srd(e, 40, 10, 11, 3072)
    g.setup_read_addrs(3, VT)
    e("s_cmp_eq_u32 s26, 12288")
    e("s_cbranch_scc0 L_proj_dma2")
    g.setup_dma(3, VT, 1280, 12288)
    e("s_branch L_proj_dma_done")
    e.label("L_proj_dma2")
    g.setup_dma(3, VT, 1280, 3072)
    e.label("L_proj_dma_done")
    zero_regs(e, ACC, 64)
    e("s_mul_i32 s44, s24, 163840")
    e("s_lshl_b32 s45, s25, 8")
    e("s_cmp_eq_u32 s26, 12288")
    e("s_cbranch_scc0 L_proj_loop2")
    g.loop("projq", 10, ACC, 3, 28, 32, 44, 45, 12288)
    e("s_branch L_proj_epi")
    e.label("L_proj_loop2")
    g.loop("projh", 10, ACC, 3, 28, 32, 44, 45, 3072)
    e.label("L_proj_epi")
    e("s_nop 7")
    e("s_nop 7")
    e(f"v_and_b32 v{VT}, 31, v0")
    e(f"v_bfe_u32 v{VT+1}, v0, 5, 1")
    e("s_lshl_b32 s22, s24, 7")
    e("s_lshl_b32 s46, s20, 6")
    e("s_add_u32 s22, s22, s46")
    e(f"v_add_u32 v{VT}, s22, v{VT}")
    e(f"v_mul_lo_u32 v{VT}, v{VT}, s26")
    e("s_lshl_b32 s22, s25, 7")
    e("s_lshl_b32 s46, s21, 6")
    e("s_add_u32 s22, s22, s46")
    e(f"v_lshlrev_b32 v{VT+1}, 2, v{VT+1}")
    e(f"v_add_u32 v{VT+1}, s22, v{VT+1}")
    e(f"v_lshlrev_b32 v{VT+1}, 1, v{VT+1}")
    e(f"v_add_u32 v{VT}, v{VT}, v{VT+1}")
    e("s_lshl_b32 s47, s26, 5")
    e("s_cmp_eq_u32 s26, 12288")
    e("s_cbranch_scc0 L_proj_epi_h")
    for mi in range(2):
        for ni in range(2):
            a = ACC + (mi*2+ni)*16
            for gq in range(4):
                e(f"v_cvt_pk_bf16_f32 v{VT+4}, v{a+4*gq}, v{a+4*gq+1}")
                e(f"v_cvt_pk_bf16_f32 v{VT+5}, v{a+4*gq+2}, v{a+4*gq+3}")
                so = "s47" if mi else "0"
                e(f"buffer_store_dwordx2 {vr(VT+4,2)}, v{VT}, s[36:39], {so} offen offset:{64*ni+16*gq}")
                e("s_nop 1")
    e("s_branch L_proj_done")
    e.label("L_proj_epi_h")
    e("s_mov_b32 s48, 0x3d372713")
    e("s_mov_b32 s49, 0x40135761")
    for ni in range(2):
        for gq in range(4):
            e(f"buffer_load_dwordx2 {vr(VT+8+ (ni*4+gq)*2,2)}, v{VT+1}, s[40:43], 0 offen offset:{64*ni+16*gq}")
    e("s_waitcnt vmcnt(0)")
    for mi in range(2):
        for ni in range(2):
            a = ACC + (mi*2+ni)*16
            for gq in range(4):
                b = VT+8+(ni*4+gq)*2
                for pr in range(2):
                    x0 = a+4*gq+2*pr; x1 = x0+1
                    rne_pair(e, VT+4, x0, x1)
                    e(f"v_lshlrev_b32 v{VT+5}, 16, v{b+pr}")
                    e(f"v_and_b32 v{VT+6}, 0xffff0000, v{b+pr}")
                    e(f"v_add_f32 v{x0}, v{x0}, v{VT+5}")
                    e(f"v_add_f32 v{x1}, v{x1}, v{VT+6}")
                    rne_pair(e, VT+4, x0, x1)
                    for x in (x0, x1):
                        e(f"v_mul_f32 v{VT+5}, v{x}, v{x}")
                        e(f"v_bfma_placeholder")
                        e.lines.pop()
                        e(f"v_fma_f32 v{VT+5}, v{VT+5}, s48, 1.0")
                        e(f"v_mul_f32 v{VT+5}, v{VT+5}, v{x}")
                        e(f"v_mul_f32 v{VT+5}, s49, v{VT+5}")
                        sigmoid_mul(e, x, VT+5, VT+6)
                e(f"v_cvt_pk_bf16_f32 v{VT+4}, v{a+4*gq}, v{a+4*gq+1}")
                e(f"v_cvt_pk_bf16_f32 v{VT+5}, v{a+4*gq+2}, v{a+4*gq+3}")
                so = "s47" if mi else "0"
                e(f"buffer_store_dwordx2 {vr(VT+4,2)}, v{VT}, s[36:39], {so} offen offset:{64*ni+16*gq}")
                e("s_nop 1")
    e.label("L_proj_done")
    e("s_endpgm")
    return kernel_desc(name, VT+32), g.BUF*2

def gen_out(e):
    name = "out_kernel"
    kernel_header(e, name)
    e("s_cmp_ge_u32 s2, 160")
    e("s_cbranch_scc1 L_out_done")
    e(f"s_load_dwordx2 s[4:5], s[0:1], {KA_WS}")
    e(f"s_load_dwordx2 s[6:7], s[0:1], {KA_WO}")
    e(f"s_load_dwordx2 s[8:9], s[0:1], {KA_W2}")
    e(f"s_load_dwordx2 s[10:11], s[0:1], {KA_B2}")
    e(f"s_load_dwordx2 s[14:15], s[0:1], {KA_X}")
    e(f"s_load_dwordx2 s[16:17], s[0:1], {KA_OUT}")
    e("v_lshrrev_b32 v1, 6, v0")
    e("s_nop 0")
    e("v_readfirstlane_b32 s3, v1")
    e("s_and_b32 s24, s2, 15")
    e("s_lshr_b32 s25, s2, 4")
    e("s_waitcnt lgkmcnt(0)")
    g = Gemm(e, 128, 64, 2)
    ACS = g.v_end; ACG = ACS + 32; VT = ACG + 32
    add64(e, 12, 4, WS_O); srd(e, 28, 12, 13, 25165824)
    srd(e, 32, 6, 7, 6144*1280)
    g.setup_read_addrs(3, VT)
    g.setup_dma(3, VT, 12288, 1280)
    zero_regs(e, ACS, 64)
    e(f"s_mul_i32 s44, s24, {128*12288}")
    e("s_lshl_b32 s45, s25, 7")
    g.loop("outs", 96, ACS, 3, 28, 32, 44, 45, 1280)
    add64(e, 12, 4, WS_H); srd(e, 28, 12, 13, 6291456)
    srd(e, 32, 8, 9, 1536*1280)
    g.setup_dma(3, VT, 3072, 1280)
    e(f"s_mul_i32 s44, s24, {128*3072}")
    e("s_lshl_b32 s45, s25, 7")
    g.loop("outg", 24, ACG, 3, 28, 32, 44, 45, 1280)
    e("s_nop 7")
    e("s_nop 7")
    srd(e, 36, 16, 17, 2621440)
    srd(e, 40, 10, 11, 1280)
    srd(e, 48, 14, 15, 2621440)
    e(f"v_and_b32 v{VT}, 31, v0")
    e(f"v_bfe_u32 v{VT+1}, v0, 5, 1")
    e("s_lshl_b32 s22, s24, 7")
    e("s_lshl_b32 s46, s20, 6")
    e("s_add_u32 s22, s22, s46")
    e(f"v_add_u32 v{VT}, s22, v{VT}")
    e(f"v_mul_u32_u24 v{VT}, 1280, v{VT}")
    e("s_lshl_b32 s22, s25, 6")
    e("s_lshl_b32 s46, s21, 5")
    e("s_add_u32 s22, s22, s46")
    e(f"v_lshlrev_b32 v{VT+1}, 2, v{VT+1}")
    e(f"v_add_u32 v{VT+1}, s22, v{VT+1}")
    e(f"v_lshlrev_b32 v{VT+1}, 1, v{VT+1}")
    e(f"v_add_u32 v{VT}, v{VT}, v{VT+1}")
    e("s_mov_b32 s47, 40960")
    e("s_mov_b32 s54, 0x3fb8aa3b")
    for gq in range(4):
        e(f"buffer_load_dwordx2 {vr(VT+8+gq*2,2)}, v{VT+1}, s[40:43], 0 offen offset:{16*gq}")
    for mi in range(2):
        for gq in range(4):
            so = "s47" if mi else "0"
            e(f"buffer_load_dwordx2 {vr(VT+16+(mi*4+gq)*2,2)}, v{VT}, s[48:51], {so} offen offset:{16*gq}")
    e("s_waitcnt vmcnt(0)")
    for mi in range(2):
        for gq in range(4):
            b = VT+8+gq*2; xx = VT+16+(mi*4+gq)*2
            for pr in range(2):
                s0 = ACS+mi*16+4*gq+2*pr; s1 = s0+1
                g0 = ACG+mi*16+4*gq+2*pr; g1 = g0+1
                rne_pair(e, VT+4, s0, s1)
                rne_pair(e, VT+4, g0, g1)
                e(f"v_lshlrev_b32 v{VT+5}, 16, v{b+pr}")
                e(f"v_and_b32 v{VT+6}, 0xffff0000, v{b+pr}")
                e(f"v_add_f32 v{g0}, v{g0}, v{VT+5}")
                e(f"v_add_f32 v{g1}, v{g1}, v{VT+6}")
                rne_pair(e, VT+4, g0, g1)
                for gg in (g0, g1):
                    e(f"v_mul_f32 v{VT+5}, s54, v{gg}")
                    sigmoid_mul(e, gg, VT+5, VT+6)
                rne_pair(e, VT+4, g0, g1)
                e(f"v_mul_f32 v{s0}, v{s0}, v{g0}")
                e(f"v_mul_f32 v{s1}, v{s1}, v{g1}")
                rne_pair(e, VT+4, s0, s1)
                e(f"v_lshlrev_b32 v{VT+5}, 16, v{xx+pr}")
                e(f"v_and_b32 v{VT+6}, 0xffff0000, v{xx+pr}")
                e(f"v_add_f32 v{s0}, v{s0}, v{VT+5}")
                e(f"v_add_f32 v{s1}, v{s1}, v{VT+6}")
            a = ACS+mi*16
            e(f"v_cvt_pk_bf16_f32 v{VT+4}, v{a+4*gq}, v{a+4*gq+1}")
            e(f"v_cvt_pk_bf16_f32 v{VT+5}, v{a+4*gq+2}, v{a+4*gq+3}")
            so = "s47" if mi else "0"
            e(f"buffer_store_dwordx2 {vr(VT+4,2)}, v{VT}, s[36:39], {so} offen offset:{16*gq}")
            e("s_nop 1")
    e.label("L_out_done")
    e("s_endpgm")
    return kernel_desc(name, VT+40), g.BUF*2
```

```python
from common import *

def wave_reduce_add(e, v, t1, t2):
    for off in (0x041F, 0x081F, 0x101F, 0x201F, 0x401F):
        e(f"ds_swizzle_b32 v{t1}, v{v} offset:{off:#x}")
        e("s_waitcnt lgkmcnt(0)")
        e(f"v_add_f32 v{v}, v{v}, v{t1}")
    e(f"v_mov_b32 v{t1}, v{v}")
    e(f"v_mov_b32 v{t2}, v{v}")
    e("s_nop 1")
    e(f"v_permlane32_swap_b32 v{t1}, v{t2}")
    e("s_nop 1")
    e(f"v_add_f32 v{v}, v{t1}, v{t2}")

def rne(e, d, s):
    e(f"v_cvt_pk_bf16_f32 v{d}, v{s}, v{s}")
    e(f"v_lshlrev_b32 v{d}, 16, v{d}")

def gen_ln(e):
    name = "ln_kernel"
    kernel_header(e, name)
    e("s_cmp_ge_u32 s2, 512")
    e("s_cbranch_scc1 L_ln_done")
    e(f"s_load_dwordx2 s[4:5], s[0:1], {KA_X}")
    e(f"s_load_dwordx2 s[6:7], s[0:1], {KA_WS}")
    e("s_waitcnt lgkmcnt(0)")
    srd(e, 8, 4, 5, 2621440)
    srd(e, 12, 6, 7, 2*2621440)
    e("v_lshrrev_b32 v1, 6, v0")
    e("s_lshl_b32 s3, s2, 2")
    e("v_add_u32 v1, s3, v1")
    e("v_mul_u32_u24 v1, 1280, v1")
    e("v_and_b32 v2, 63, v0")
    e("v_lshl_add_u32 v1, v2, 2, v1")
    for j in range(5):
        e(f"buffer_load_dword v{10+j}, v1, s[8:11], 0 offen offset:{256*j}")
    e("s_waitcnt vmcnt(0)")
    X = 20
    for j in range(5):
        e(f"v_lshlrev_b32 v{X+2*j}, 16, v{10+j}")
        e(f"v_and_b32 v{X+2*j+1}, 0xffff0000, v{10+j}")
    e("s_mov_b32 s16, 0x3acccccd")
    e("s_mov_b32 s17, 0x3727c5ac")
    for p in range(2):
        e(f"v_add_f32 v3, v{X}, v{X+1}")
        for i in range(2, 10):
            e(f"v_add_f32 v3, v3, v{X+i}")
        wave_reduce_add(e, 3, 4, 5)
        e("v_mul_f32 v3, s16, v3")
        e(f"v_sub_f32 v6, v{X}, v3")
        e("v_mul_f32 v7, v6, v6")
        for i in range(1, 10):
            e(f"v_sub_f32 v6, v{X+i}, v3")
            e("v_fmac_f32 v7, v6, v6")
        wave_reduce_add(e, 7, 4, 5)
        e("v_mul_f32 v7, s16, v7")
        rne(e, 3, 3)
        rne(e, 7, 7)
        e("v_add_f32 v7, s17, v7")
        rne(e, 7, 7)
        e("v_sqrt_f32 v7, v7")
        e("s_nop 0")
        rne(e, 7, 7)
        e("v_rcp_f32 v7, v7")
        e("s_nop 0")
        for i in range(10):
            e(f"v_sub_f32 v6, v{X+i}, v3")
            rne(e, 6, 6)
            e(f"v_mul_f32 v{X+i}, v6, v7")
        for j in range(5):
            e(f"v_cvt_pk_bf16_f32 v{10+j}, v{X+2*j}, v{X+2*j+1}")
        for j in range(5):
            if p == 0:
                e(f"buffer_store_dword v{10+j}, v1, s[12:15], 0 offen offset:{256*j}")
            else:
                e(f"s_mov_b32 s18, {WS_Y}")
                e(f"buffer_store_dword v{10+j}, v1, s[12:15], s18 offen offset:{256*j}")
        if p == 0:
            e("s_nop 1")
            for j in range(5):
                e(f"v_lshlrev_b32 v{X+2*j}, 16, v{10+j}")
                e(f"v_and_b32 v{X+2*j+1}, 0xffff0000, v{10+j}")
    e("s_waitcnt vmcnt(0)")
    e.label("L_ln_done")
    e("s_endpgm")
    return kernel_desc(name, 32)
```

```python
import sys
sys.path.insert(0, "gen")
from common import *
import k_ln, k_gemm, k_attn
import importlib
e = E()
hdr = open("recurrent_scan__gqa_block_cached__mixer_channel_mlp__prompt.s.ref").read().split("\n")
hdr = [l for l in hdr if l.startswith(";") and "@launch" not in l and "Override" not in l and "grid=ceil" not in l]
body = E()
body.raw('.amdgcn_target "amdgcn-amd-amdhsa--gfx950"')
body.raw(".text")
descs = []
descs.append(k_ln.gen_ln(body))
d, lds_proj = k_gemm.gen_proj(body); descs.append(d)
descs.append(k_attn.gen_attn(body))
d, lds_out = k_gemm.gen_out(body); descs.append(d)
out = "\n".join(hdr) + "\n"
out += "; @launch kernel=ln_kernel grid=(512,1,1) block=(256,1,1) lds=0\n"
out += f"; @launch kernel=proj_kernel grid=(960,1,1) block=(256,1,1) lds={lds_proj}\n"
out += f"; @launch kernel=attn_kernel grid=(256,1,1) block=(512,1,1) lds={k_attn.ATTN_LDS}\n"
out += f"; @launch kernel=out_kernel grid=(160,1,1) block=(256,1,1) lds={lds_out}\n"
out += body.text()
out += '.section .rodata,"a"\n'
for d in descs:
    out += ".p2align 6\n" + d
path = sys.argv[1] if len(sys.argv) > 1 else "recurrent_scan__gqa_block_cached__mixer_channel_mlp__prompt.s"
open(path, "w").write(out)
print("wrote", path, len(out))
```
